```python
import torch

def _softmax(x, axis=-1):
    return torch.softmax(x, dim=axis)
def _gelu(x):
    return torch.nn.functional.gelu(x, approximate="tanh")
def _silu(x):
    return torch.nn.functional.silu(x)
def _sigmoid(x):
    return torch.sigmoid(x)
def _layernorm(x, axis=-1, eps=1e-5):
    m = x.mean(dim=axis, keepdim=True)
    v = x.var(dim=axis, keepdim=True, unbiased=False)
    return (x - m) / torch.sqrt(v + eps)
def _scatter_add(tgt, idx, src, axis=0):
    return tgt.clone().index_add_(axis, idx, src)
def _segment_sum(src, seg, n):
    out = torch.zeros((n,) + src.shape[1:], dtype=src.dtype)
    return out.index_add_(0, seg, src)
def _pad(x, pw):
    flat = tuple(v for pair in reversed(pw) for v in pair)
    return torch.nn.functional.pad(x, flat)

kernel_name = 'gated_mix__sliding_block__mixer_s_mlp__prompt'

def setup_inputs():

    _w = (lambda a: (lambda t: t.to(torch.bfloat16) if t.is_floating_point() else t)(torch.as_tensor(a)))
    def _A_setup():
        B, S, D = 1, 2048, 448
        return {
            "x": _w((lambda *s: torch.randn(*s, dtype=torch.bfloat16) * 0.05)(B, S, D)),
            "wqkv": _w((lambda *s: torch.randn(*s, dtype=torch.bfloat16) * 3.2)(D, 3 * D)),
            "wo": _w((lambda *s: torch.randn(*s, dtype=torch.bfloat16) * 0.05)(D, D)),
        }
    _A_in = _A_setup()

    def _B_setup():
        B, S, D, F = 1, 2048, 448, 1792
        return {
            "x":  _w((lambda *s: torch.randn(*s, dtype=torch.bfloat16) * 0.05)(B, S, D)),
            "w1": _w((lambda *s: torch.randn(*s, dtype=torch.bfloat16) * 3.2)(D, D) * (D ** -0.5)),
            "w2": _w((lambda *s: torch.randn(*s, dtype=torch.bfloat16) * 3.2)(D, D) * (D ** -0.5)),
            "w3": _w((lambda *s: torch.randn(*s, dtype=torch.bfloat16) * 3.2)(D, F) * (D ** -0.5)),
            "w4": _w((lambda *s: torch.randn(*s, dtype=torch.bfloat16) * 3.2)(F, D) * (F ** -0.5)),
        }
    _B_in = _B_setup()

    return {
        "A_x": _A_in["x"],
        "A_wqkv": _A_in["wqkv"],
        "A_wo": _A_in["wo"],
        "B_x": _B_in["x"],
        "B_w1": _B_in["w1"],
        "B_w2": _B_in["w2"],
        "B_w3": _B_in["w3"],
        "B_w4": _B_in["w4"],
        "gate_w": _w((lambda *s: torch.randn(*s, dtype=torch.bfloat16) * 0.05)(448) * 16.0),
    }

def reference(A_x, A_wqkv, A_wo, B_x, B_w1, B_w2, B_w3, B_w4, gate_w):
    def _A_ref(x, wqkv, wo):
        B, S, D = x.shape
        H = 16; Dh = D // H; W = 256
        qkv = (lambda x, *d: x.permute(*d))((x @ wqkv).reshape(B, S, 3, H, Dh), 2, 0, 3, 1, 4)
        q, k, v = qkv[0], qkv[1], qkv[2]
        scores = torch.einsum("bhqd,bhkd->bhqk", q, k) * (Dh ** -0.5)
        idx = torch.arange(S)
        mask = (idx[:, None] - idx[None, :] >= 0) & (idx[:, None] - idx[None, :] < W)
        scores = torch.where(mask[None, None], scores, -1e9)
        p = _softmax(scores, axis=-1)
        o = torch.einsum("bhqk,bhkd->bhqd", p, v)
        return (lambda x, *d: x.permute(*d))(o, 0, 2, 1, 3).reshape(B, S, D) @ wo

    def _B_ref(x, w1, w2, w3, w4):
        B, S, D = x.shape
        h = _gelu(_layernorm(x, axis=-1) @ w1)
        c = D // 4
        g0 = _pad(h[:, :, 0*c:1*c], ((0, 0), (1, 0), (0, 0)))[:, :S, :]
        g1 = _pad(h[:, :, 1*c:2*c], ((0, 0), (0, 1), (0, 0)))[:, 1:, :]
        g2 = _pad(h[:, :, 2*c:3*c], ((0, 0), (2, 0), (0, 0)))[:, :S, :]
        g3 = _pad(h[:, :, 3*c:   ], ((0, 0), (0, 2), (0, 0)))[:, 2:, :]
        hs = torch.concatenate([g0, g1, g2, g3], axis=-1) @ w2
        x1 = x + hs
        h2 = _gelu(_layernorm(x1, axis=-1) @ w3) @ w4
        return x1 + h2

    x = A_x
    g = _sigmoid((x * gate_w).sum(-1, keepdims=True))
    a = _A_ref(x, A_wqkv, A_wo)
    b = _B_ref(x, B_w1, B_w2, B_w3, B_w4)
    return g * a + (1 - g) * b
```

```python
import sys, struct

S, D, H, DH, W, F = 2048, 448, 16, 28, 256, 1792

WS_Q = 0x000000
WS_K = 0x200000
WS_V = 0x400000
WS_HSH = 0x600000
WS_O = 0x800000
WS_X1 = 0xA00000
WS_H3 = 0xC00000
WS_G = 0x1400000
WS_SIZE = 0x1500000

ACT_BYTES = S * D * 2


def f32(x):
    return "0x%08x" % struct.unpack("<I", struct.pack("<f", x))[0]


class Asm:
    def __init__(self):
        self.lines = []
        self.nlab = 0

    def __call__(self, s):
        for l in s.strip("\n").split("\n"):
            self.lines.append("    " + l.strip())

    def label(self, l):
        self.lines.append(l + ":")

    def newlabel(self, p="L"):
        self.nlab += 1
        return "%s_%d" % (p, self.nlab)

    def raw(self, s):
        self.lines.append(s)

    def text(self):
        return "\n".join(self.lines) + "\n"


def vr(b, n=1):
    return "v%d" % b if n == 1 else "v[%d:%d]" % (b, b + n - 1)


def sr(b, n=1):
    return "s%d" % b if n == 1 else "s[%d:%d]" % (b, b + n - 1)


def make_srd(a, d, base_lo, base_hi, nbytes, off=None):
    if off is None:
        a("s_mov_b32 s%d, s%d" % (d, base_lo))
        a("s_mov_b32 s%d, s%d" % (d + 1, base_hi))
    else:
        a("s_add_u32 s%d, s%d, %s" % (d, base_lo, off))
        a("s_addc_u32 s%d, s%d, 0" % (d + 1, base_hi))
    a("s_mov_b32 s%d, %s" % (d + 2, nbytes))
    a("s_mov_b32 s%d, 0x00020000" % (d + 3))


LOG2E = 1.4426950408889634
GELU_C0 = -2.0 * 0.7978845608028654 * LOG2E
GELU_C1 = GELU_C0 * 0.044715

S_ACT = 4
S_WT = 8
S_WS = 12
S_X = 16
S_RB, S_CT, S_WAVE, S_LDW, S_BSTR, S_SOFF, S_M0, S_ROT = 20, 21, 22, 23, 24, 25, 26, 27
S_T = 40
S_C = 48
V_LANE, V_L15, V_G = 1, 2, 3
V_AOFF, V_WOFF = 4, 5
V_TMP = 6
V_TA = 16
V_ROW = 23
V_ST = 24
V_ACT = 32
V_ACC = 88
V_WF = 116
V_EX = 172
LDS_W = 512
LDS_CS = 0
GEMM_LDS = 100352 + 512


def gemm448_prologue(a, rotate):
    a("v_and_b32 v%d, 63, v0" % V_LANE)
    a("v_lshrrev_b32 v%d, 6, v0" % V_TMP)
    a("v_and_b32 v%d, 15, v0" % V_L15)
    a("v_readfirstlane_b32 s%d, v%d" % (S_WAVE, V_TMP))
    a("v_bfe_u32 v%d, v0, 4, 2" % V_G)
    a("v_lshlrev_b32 v%d, 4, v%d" % (V_ROW, V_TMP))
    a("v_add_u32 v%d, v%d, v%d" % (V_ROW, V_ROW, V_L15))
    a("s_lshl_b32 s%d, s%d, 7" % (S_SOFF, S_RB))
    a("v_add_u32 v%d, s%d, v%d" % (V_ROW, S_SOFF, V_ROW))
    a("s_movk_i32 s%d, 896" % S_SOFF)
    a("v_mul_lo_u32 v%d, v%d, s%d" % (V_AOFF, V_ROW, S_SOFF))
    a("v_lshl_add_u32 v%d, v%d, 4, v%d" % (V_AOFF, V_G, V_AOFF))
    t0, t1, t2, t3 = V_TMP, V_TMP + 1, V_TMP + 2, V_TMP + 3
    a("v_mul_u32_u24 v%d, 4682, v0" % t0)
    a("v_lshrrev_b32 v%d, 16, v%d" % (t0, t0))
    a("v_mul_u32_u24 v%d, 14, v%d" % (t1, t0))
    a("v_sub_u32 v%d, v0, v%d" % (t1, t1))
    a("v_bfe_u32 v%d, v%d, 2, 2" % (t2, t0))
    a("v_lshlrev_b32 v%d, 3, v%d" % (t2, t2))
    a("v_bfe_u32 v%d, v%d, 4, 1" % (t3, t0))
    a("v_lshl_add_u32 v%d, v%d, 2, v%d" % (t2, t3, t2))
    a("v_and_b32 v%d, 3, v%d" % (t3, t0))
    a("v_add_u32 v%d, v%d, v%d" % (t2, t2, t3))
    a("v_mul_lo_u32 v%d, v%d, s%d" % (V_WOFF, t2, S_LDW))
    a("v_lshl_add_u32 v%d, v%d, 4, v%d" % (V_WOFF, t1, V_WOFF))
    a("s_lshl_b32 s%d, s%d, 5" % (S_BSTR, S_LDW))
    a("s_lshl_b32 s%d, s%d, 10" % (S_M0, S_WAVE))
    a("s_add_u32 s%d, s%d, %d" % (S_M0, S_M0, LDS_W))
    a("s_mov_b32 s%d, 0" % S_SOFF)
    l7 = a.newlabel("Lw7")
    ld = a.newlabel("Lld")
    a("s_cmp_eq_u32 s%d, 7" % S_WAVE)
    a("s_cbranch_scc1 %s" % l7)
    for j in range(14):
        a("s_mov_b32 m0, s%d" % S_M0)
        a("s_add_u32 s%d, s%d, 7168" % (S_M0, S_M0))
        a("buffer_load_dwordx4 v%d, s[%d:%d], s%d offen lds" % (V_WOFF, S_WT, S_WT + 3, S_SOFF))
        a("s_add_u32 s%d, s%d, s%d" % (S_SOFF, S_SOFF, S_BSTR))
        a("buffer_load_dwordx4 %s, v%d, s[%d:%d], 0 offen offset:%d" % (vr(V_ACT + 4 * j, 4), V_AOFF, S_ACT, S_ACT + 3, 64 * j))
    a("s_branch %s" % ld)
    a.label(l7)
    for j in range(14):
        a("buffer_load_dword v%d, v%d, s[%d:%d], 0 offen" % (V_TMP + 4, V_AOFF, S_ACT, S_ACT + 3))
        a("buffer_load_dwordx4 %s, v%d, s[%d:%d], 0 offen offset:%d" % (vr(V_ACT + 4 * j, 4), V_AOFF, S_ACT, S_ACT + 3, 64 * j))
    a.label(ld)
    a("v_lshrrev_b32 v%d, 2, v%d" % (t0, V_L15))
    a("v_lshl_add_u32 v%d, v%d, 2, v%d" % (t0, V_G, t0))
    a("v_mul_u32_u24 v%d, 224, v%d" % (t0, t0))
    a("v_and_b32 v%d, 3, v%d" % (t1, V_L15))
    a("v_lshl_add_u32 v%d, v%d, 3, v%d" % (t0, t1, t0))
    if LDS_W:
        a("v_add_u32 v%d, %d, v%d" % (t0, LDS_W, t0))
    if rotate:
        a("s_cmp_eq_u32 s%d, 7" % S_WAVE)
        a("s_cselect_b32 s%d, 0, s%d" % (S_ROT, S_WAVE))
        for i in range(7):
            a("s_add_u32 s%d, s%d, %d" % (S_T + i, S_ROT, i))
            a("s_cmp_ge_u32 s%d, 7" % (S_T + i))
            a("s_cselect_b32 s%d, 7, 0" % S_SOFF)
            a("s_sub_u32 s%d, s%d, s%d" % (S_T + i, S_T + i, S_SOFF))
            a("s_lshl_b32 s%d, s%d, 5" % (S_T + i, S_T + i))
    else:
        for i in range(7):
            a("s_mov_b32 s%d, %d" % (S_T + i, 32 * i))
    for i in range(7):
        a("v_add_u32 v%d, s%d, v%d" % (V_TA + i, S_T + i, t0))


def gemm448_main(a, swapped, stats, colsum, extra_vm=0):
    ones = V_ST + 6
    if stats or colsum:
        a("v_mov_b32 v%d, 0x3f803f80" % ones)
        for i in range(6):
            a("v_mov_b32 v%d, 0" % (V_ST + i))
    for j in range(15):
        if j < 14:
            a("s_waitcnt vmcnt(%d)" % (2 * (13 - j) + extra_vm))
            a("s_barrier")
            if j == 9:
                for i in range(7):
                    a("v_add_u32 v%d, %d, v%d" % (V_TA + i, 9 * 7168, V_TA + i))
            base = (j if j < 9 else j - 9) * 7168
            buf = V_WF + 28 * (j & 1)
            for i in range(7):
                for qd in range(2):
                    a("ds_read_b64_tr_b16 %s, v%d offset:%d" % (vr(buf + 4 * i + 2 * qd, 2), V_TA + i, base + qd * 3584))
        if j > 0:
            jj = j - 1
            a("s_waitcnt lgkmcnt(%d)" % (14 if j < 14 else 0))
            buf = V_WF + 28 * (jj & 1)
            act = V_ACT + 4 * jj
            for i in range(7):
                c = "0" if jj == 0 else vr(V_ACC + 4 * i, 4)
                if swapped:
                    a("v_mfma_f32_16x16x32_bf16 %s, %s, %s, %s" % (vr(V_ACC + 4 * i, 4), vr(act, 4), vr(buf + 4 * i, 4), c))
                else:
                    a("v_mfma_f32_16x16x32_bf16 %s, %s, %s, %s" % (vr(V_ACC + 4 * i, 4), vr(buf + 4 * i, 4), vr(act, 4), c))
                if stats and i < 4:
                    a("v_dot2_f32_bf16 v%d, v%d, v%d, v%d" % (V_ST + (i & 1), act + i, act + i, V_ST + (i & 1)))
                    a("v_dot2_f32_bf16 v%d, v%d, v%d, v%d" % (V_ST + 2 + (i & 1), act + i, ones, V_ST + 2 + (i & 1)))
                if colsum and i >= 3:
                    q = i - 3
                    a("v_dot2_f32_bf16 v%d, v%d, v%d, v%d" % (V_ST + 4 + (q & 1), buf + q, ones, V_ST + 4 + (q & 1)))


def xlane_sum(a, v, t):
    a("v_mov_b32 v%d, v%d" % (t, v))
    a("s_nop 1")
    a("v_permlane32_swap_b32 v%d, v%d" % (v, t))
    a("s_nop 1")
    a("v_add_f32 v%d, v%d, v%d" % (v, v, t))
    a("v_mov_b32 v%d, v%d" % (t, v))
    a("s_nop 1")
    a("v_permlane16_swap_b32 v%d, v%d" % (v, t))
    a("s_nop 1")
    a("v_add_f32 v%d, v%d, v%d" % (v, v, t))


def xlane_max(a, v, t):
    a("v_mov_b32 v%d, v%d" % (t, v))
    a("s_nop 1")
    a("v_permlane32_swap_b32 v%d, v%d" % (v, t))
    a("s_nop 1")
    a("v_max_f32 v%d, v%d, v%d" % (v, v, t))
    a("v_mov_b32 v%d, v%d" % (t, v))
    a("s_nop 1")
    a("v_permlane16_swap_b32 v%d, v%d" % (v, t))
    a("s_nop 1")
    a("v_max_f32 v%d, v%d, v%d" % (v, v, t))


def ln_gelu_epilogue(a):
    t = V_TMP
    a("s_nop 3")
    a("v_add_f32 v%d, v%d, v%d" % (V_ST, V_ST, V_ST + 1))
    a("v_add_f32 v%d, v%d, v%d" % (V_ST + 2, V_ST + 2, V_ST + 3))
    a("v_add_f32 v%d, v%d, v%d" % (V_ST + 4, V_ST + 4, V_ST + 5))
    xlane_sum(a, V_ST + 4, t)
    a("s_lshl_b32 s%d, s%d, 1" % (S_SOFF, S_T))
    a("v_lshl_add_u32 v%d, v%d, 2, s%d" % (t + 1, V_L15, S_SOFF))
    a("ds_write_b32 v%d, v%d offset:%d" % (t + 1, V_ST + 4, LDS_CS))
    xlane_sum(a, V_ST, t)
    xlane_sum(a, V_ST + 2, t)
    a("s_waitcnt lgkmcnt(0)")
    a("s_barrier")
    cs = V_ACT
    a("v_lshlrev_b32 v%d, 4, v%d" % (t + 1, V_G))
    for i in range(7):
        a("s_lshl_b32 s%d, s%d, 1" % (S_SOFF, S_T + i))
        a("v_add_u32 v%d, s%d, v%d" % (t + 2, S_SOFF, t + 1))
        a("ds_read_b128 %s, v%d offset:%d" % (vr(cs + 4 * i, 4), t + 2, LDS_CS))
    mean, rstd, nmr = V_ST + 2, V_ST + 4, V_ST + 6
    a("v_mul_f32 v%d, %s, v%d" % (mean, f32(1.0 / D), V_ST + 2))
    a("v_mul_f32 v%d, %s, v%d" % (V_ST, f32(1.0 / D), V_ST))
    a("v_fma_f32 v%d, -v%d, v%d, v%d" % (V_ST, mean, mean, V_ST))
    a("v_max_f32 v%d, 0, v%d" % (V_ST, V_ST))
    a("v_add_f32 v%d, %s, v%d" % (V_ST, f32(1e-5), V_ST))
    a("v_rsq_f32 v%d, v%d" % (rstd, V_ST))
    a("s_nop 0")
    a("v_mul_f32 v%d, v%d, v%d" % (nmr, mean, rstd))
    a("v_sub_f32 v%d, 0, v%d" % (nmr, nmr))
    a("s_mov_b32 s%d, %s" % (S_C, f32(GELU_C1)))
    a("s_mov_b32 s%d, %s" % (S_C + 1, f32(GELU_C1)))
    a("s_mov_b32 s%d, 1.0" % (S_C + 2))
    a("s_mov_b32 s%d, 1.0" % (S_C + 3))
    c0 = V_EX
    a("v_mov_b32 v%d, %s" % (c0, f32(GELU_C0)))
    a("v_mov_b32 v%d, %s" % (c0 + 1, f32(GELU_C0)))
    a("s_waitcnt lgkmcnt(0)")
    u = V_EX + 2
    for i in range(7):
        for hh in range(2):
            y = V_ACC + 4 * i + 2 * hh
            c = cs + 4 * i + 2 * hh
            uu = u + 4 * ((2 * i + hh) & 1)
            a("v_pk_mul_f32 %s, %s, %s op_sel_hi:[1,0]" % (vr(c, 2), vr(c, 2), vr(nmr, 2)))
            a("v_pk_fma_f32 %s, %s, %s, %s op_sel_hi:[1,0,1]" % (vr(y, 2), vr(y, 2), vr(rstd, 2), vr(c, 2)))
            a("v_pk_mul_f32 %s, %s, %s" % (vr(uu, 2), vr(y, 2), vr(y, 2)))
            a("v_pk_fma_f32 %s, %s, s[%d:%d], %s" % (vr(uu, 2), vr(uu, 2), S_C, S_C + 1, vr(c0, 2)))
            a("v_pk_mul_f32 %s, %s, %s" % (vr(uu, 2), vr(uu, 2), vr(y, 2)))
            a("v_exp_f32 v%d, v%d" % (uu, uu))
            a("v_exp_f32 v%d, v%d" % (uu + 1, uu + 1))
            a("s_nop 0")
            a("v_pk_add_f32 %s, %s, s[%d:%d]" % (vr(uu, 2), vr(uu, 2), S_C + 2, S_C + 3))
            a("v_rcp_f32 v%d, v%d" % (uu, uu))
            a("v_rcp_f32 v%d, v%d" % (uu + 1, uu + 1))
            a("s_nop 0")
            a("v_pk_mul_f32 %s, %s, %s" % (vr(y, 2), vr(y, 2), vr(uu, 2)))
            a("v_cvt_pk_bf16_f32 v%d, v%d, v%d" % (V_WF + 2 * i + hh, y, y + 1))


def pack_acc(a):
    a("s_nop 7")
    for i in range(7):
        for hh in range(2):
            y = V_ACC + 4 * i + 2 * hh
            a("v_cvt_pk_bf16_f32 v%d, v%d, v%d" % (V_WF + 2 * i + hh, y, y + 1))


def kernel_header(a, name):
    a.raw(".globl %s\n.p2align 8\n.type %s,@function\n%s:" % (name, name, name))


def kernel_desc(name, vgpr, sgpr=96):
    acc = (vgpr + 3) // 4 * 4
    return """.p2align 6
.amdhsa_kernel %s
  .amdhsa_next_free_vgpr %d
  .amdhsa_next_free_sgpr %d
  .amdhsa_accum_offset %d
  .amdhsa_group_segment_fixed_size 0
  .amdhsa_kernarg_size 96
  .amdhsa_user_sgpr_count 2
  .amdhsa_user_sgpr_kernarg_segment_ptr 1
  .amdhsa_system_sgpr_workgroup_id_x 1
.end_amdhsa_kernel""" % (name, vgpr, sgpr, acc)


def gen_k1(a):
    kernel_header(a, "k1_kernel")
    a("s_cmp_ge_u32 s2, 272")
    a("s_cbranch_scc1 K1_end")
    a("s_load_dwordx4 s[28:31], s[0:1], 0")
    a("s_load_dwordx2 s[32:33], s[0:1], 32")
    a("s_load_dwordx2 s[34:35], s[0:1], 64")
    a("s_load_dwordx2 s[36:37], s[0:1], 88")
    a("s_cmp_ge_u32 s2, 256")
    a("s_cbranch_scc1 K1_gate")
    a("s_and_b32 s38, s2, 7")
    a("s_lshr_b32 s39, s2, 3")
    a("s_lshr_b32 s%d, s38, 1" % S_RB)
    a("s_lshl_b32 s%d, s%d, 2" % (S_RB, S_RB))
    a("s_and_b32 s%d, s39, 3" % S_CT)
    a("s_add_u32 s%d, s%d, s%d" % (S_RB, S_RB, S_CT))
    a("s_and_b32 s%d, s38, 1" % S_CT)
    a("s_lshl_b32 s%d, s%d, 3" % (S_CT, S_CT))
    a("s_lshr_b32 s39, s39, 2")
    a("s_add_u32 s%d, s%d, s39" % (S_CT, S_CT))
    a("s_waitcnt lgkmcnt(0)")
    make_srd(a, S_ACT, 28, 29, ACT_BYTES)
    make_srd(a, S_WS, 36, 37, WS_SIZE)
    a("s_cmp_ge_u32 s%d, 12" % S_CT)
    a("s_cbranch_scc1 K1_h")
    a("s_mul_i32 s38, s%d, 224" % S_CT)
    make_srd(a, S_WT, 30, 31, "0x%x" % (D * 3 * D * 2), "s38")
    a("s_sub_u32 s%d, s%d, s38" % (S_WT + 2, S_WT + 2))
    a("s_movk_i32 s%d, 2688" % S_LDW)
    gemm448_prologue(a, False)
    a("s_cmp_ge_u32 s%d, 8" % S_CT)
    a("s_cbranch_scc1 K1_v")
    a("s_lshl_b32 s38, s%d, 3" % S_RB)
    a("s_add_u32 s38, s38, s%d" % S_WAVE)
    a("s_lshl_b32 s38, s38, 10")
    a("s_and_b32 s39, s%d, 3" % S_CT)
    a("s_lshl_b32 s39, s39, 19")
    a("s_add_u32 s38, s38, s39")
    a("s_lshr_b32 s39, s%d, 2" % S_CT)
    a("s_lshl_b32 s39, s39, 21")
    a("s_add_u32 s38, s38, s39")
    t0, t1, t2 = V_TMP, V_TMP + 1, V_TMP + 2
    for t in range(7):
        o = V_EX + t
        a("v_lshlrev_b32 v%d, 2, v%d" % (t0, V_G))
        a("v_add_u32 v%d, %d, v%d" % (t0, 16 * t, t0))
        a("v_mul_u32_u24 v%d, 2341, v%d" % (t1, t0))
        a("v_lshrrev_b32 v%d, 16, v%d" % (t1, t1))
        a("v_mul_u32_u24 v%d, 28, v%d" % (t2, t1))
        a("v_sub_u32 v%d, v%d, v%d" % (t0, t0, t2))
        a("v_lshlrev_b32 v%d, 17, v%d" % (o, t1))
        a("v_lshrrev_b32 v%d, 3, v%d" % (t2, t0))
        a("v_lshl_add_u32 v%d, v%d, 8, v%d" % (o, t2, o))
        a("v_and_b32 v%d, 4, v%d" % (t2, t0))
        a("v_lshl_add_u32 v%d, v%d, 1, v%d" % (o, t2, o))
        a("v_lshl_add_u32 v%d, v%d, 4, v%d" % (o, V_L15, o))
    a("v_lshlrev_b32 v%d, 17, v%d" % (V_EX + 7, V_G))
    a("v_lshl_add_u32 v%d, v%d, 4, v%d" % (V_EX + 7, V_L15, V_EX + 7))
    a("v_mov_b32 v%d, 0" % (V_EX + 8))
    a("v_mov_b32 v%d, 0" % (V_EX + 9))
    gemm448_main(a, False, False, False)
    pack_acc(a)
    for t in range(7):
        a("buffer_store_dwordx2 %s, v%d, s[%d:%d], s38 offen" % (vr(V_WF + 2 * t, 2), V_EX + t, S_WS, S_WS + 3))
    a("buffer_store_dwordx2 %s, v%d, s[%d:%d], s38 offen offset:776" % (vr(V_EX + 8, 2), V_EX + 7, S_WS, S_WS + 3))
    a("s_endpgm")
    a.label("K1_v")
    a("s_lshl_b32 s38, s%d, 3" % S_RB)
    a("s_add_u32 s38, s38, s%d" % S_WAVE)
    a("s_and_b32 s39, s38, 1")
    a("s_lshr_b32 s38, s38, 1")
    a("s_lshl_b32 s38, s38, 11")
    a("s_lshl_b32 s39, s39, 3")
    a("s_add_u32 s38, s38, s39")
    a("s_and_b32 s39, s%d, 3" % S_CT)
    a("s_lshl_b32 s39, s39, 19")
    a("s_add_u32 s38, s38, s39")
    a("s_add_u32 s38, s38, 0x%x" % WS_V)
    for t in range(7):
        o = V_EX + t
        a("v_add_u32 v%d, %d, v%d" % (t0, 16 * t, V_L15))
        a("v_mul_u32_u24 v%d, 2341, v%d" % (t1, t0))
        a("v_lshrrev_b32 v%d, 16, v%d" % (t1, t1))
        a("v_mul_u32_u24 v%d, 28, v%d" % (t2, t1))
        a("v_sub_u32 v%d, v%d, v%d" % (t0, t0, t2))
        a("v_lshlrev_b32 v%d, 17, v%d" % (o, t1))
        a("v_lshrrev_b32 v%d, 4, v%d" % (t2, t0))
        a("v_lshl_add_u32 v%d, v%d, 10, v%d" % (o, t2, o))
        a("v_and_b32 v%d, 15, v%d" % (t2, t0))
        a("v_lshl_add_u32 v%d, v%d, 4, v%d" % (o, t2, o))
        a("v_lshl_add_u32 v%d, v%d, 8, v%d" % (o, V_G, o))
    a("v_lshlrev_b32 v%d, 17, v%d" % (V_EX + 7, V_G))
    a("v_and_b32 v%d, 3, v%d" % (t0, V_L15))
    a("v_lshl_add_u32 v%d, v%d, 8, v%d" % (V_EX + 7, t0, V_EX + 7))
    a("v_lshrrev_b32 v%d, 2, v%d" % (t0, V_L15))
    a("v_lshl_add_u32 v%d, v%d, 4, v%d" % (V_EX + 7, t0, V_EX + 7))
    a("v_mov_b32 v%d, 0x3f803f80" % t1)
    a("v_cmp_eq_u32 vcc, 0, v%d" % t0)
    a("s_nop 1")
    a("v_cndmask_b32 v%d, 0, v%d, vcc" % (V_EX + 8, t1))
    a("v_cndmask_b32 v%d, 0, v%d, vcc" % (V_EX + 9, t1))
    gemm448_main(a, True, False, False)
    pack_acc(a)
    for t in range(7):
        a("buffer_store_dwordx2 %s, v%d, s[%d:%d], s38 offen" % (vr(V_WF + 2 * t, 2), V_EX + t, S_WS, S_WS + 3))
    a("buffer_store_dwordx2 %s, v%d, s[%d:%d], s38 offen offset:%d" % (vr(V_EX + 8, 2), V_EX + 7, S_WS, S_WS + 3, 1024 + 192))
    a("s_endpgm")
    a.label("K1_h")
    a("s_sub_u32 s39, s%d, 12" % S_CT)
    a("s_mul_i32 s38, s39, 224")
    make_srd(a, S_WT, 32, 33, "0x%x" % (D * D * 2), "s38")
    a("s_sub_u32 s%d, s%d, s38" % (S_WT + 2, S_WT + 2))
    a("s_movk_i32 s%d, 896" % S_LDW)
    gemm448_prologue(a, True)
    gemm448_main(a, False, True, True)
    ln_gelu_epilogue(a)
    a("s_lshr_b32 s%d, s39, 1" % S_SOFF)
    a("s_lshl_b32 s%d, 1, s%d" % (S_SOFF, S_SOFF))
    a("s_sub_u32 s%d, 0, s%d" % (S_M0, S_SOFF))
    a("s_and_b32 s39, s39, 1")
    a("s_cmp_eq_u32 s39, 1")
    a("s_cselect_b32 s%d, s%d, s%d" % (S_SOFF, S_M0, S_SOFF))
    a("v_add_u32 v%d, s%d, v%d" % (t0, S_SOFF, V_ROW))
    a("v_cmp_gt_u32 vcc, 2048, v%d" % t0)
    a("v_and_b32 v%d, 2047, v%d" % (t0, t0))
    a("v_mul_u32_u24 v%d, 896, v%d" % (t0, t0))
    a("v_lshl_add_u32 v%d, v%d, 3, v%d" % (t0, V_G, t0))
    a("s_add_u32 s38, s38, 0x%x" % WS_HSH)
    a("v_add_u32 v%d, s38, v%d" % (t0, t0))
    for i in range(14):
        a("v_cndmask_b32 v%d, 0, v%d, vcc" % (V_WF + i, V_WF + i))
    for i in range(7):
        a("buffer_store_dwordx2 %s, v%d, s[%d:%d], s%d offen" % (vr(V_WF + 2 * i, 2), t0, S_WS, S_WS + 3, S_T + i))
    a("s_endpgm")
    a.label("K1_gate")
    a("s_sub_u32 s%d, s2, 256" % S_RB)
    a("s_waitcnt lgkmcnt(0)")
    make_srd(a, S_ACT, 28, 29, ACT_BYTES)
    make_srd(a, S_WS, 36, 37, WS_SIZE)
    make_srd(a, S_X, 34, 35, 896)
    a("v_lshrrev_b32 v%d, 6, v0" % V_TMP)
    a("v_and_b32 v%d, 15, v0" % V_L15)
    a("v_bfe_u32 v%d, v0, 4, 2" % V_G)
    a("v_lshlrev_b32 v%d, 4, v%d" % (V_ROW, V_TMP))
    a("v_add_u32 v%d, v%d, v%d" % (V_ROW, V_ROW, V_L15))
    a("s_lshl_b32 s%d, s%d, 7" % (S_SOFF, S_RB))
    a("v_add_u32 v%d, s%d, v%d" % (V_ROW, S_SOFF, V_ROW))
    a("v_mul_u32_u24 v%d, 896, v%d" % (V_AOFF, V_ROW))
    a("v_lshl_add_u32 v%d, v%d, 4, v%d" % (V_AOFF, V_G, V_AOFF))
    a("v_lshlrev_b32 v%d, 4, v%d" % (V_WOFF, V_G))
    for j in range(14):
        a("buffer_load_dwordx4 %s, v%d, s[%d:%d], 0 offen offset:%d" % (vr(V_ACT + 4 * j, 4), V_AOFF, S_ACT, S_ACT + 3, 64 * j))
        a("buffer_load_dwordx4 %s, v%d, s[%d:%d], 0 offen offset:%d" % (vr(V_WF + 4 * j, 4), V_WOFF, S_X, S_X + 3, 64 * j))
    a("v_mov_b32 v%d, 0" % V_ST)
    a("v_mov_b32 v%d, 0" % (V_ST + 1))
    for j in range(14):
        a("s_waitcnt vmcnt(%d)" % (2 * (13 - j)))
        for i in range(4):
            a("v_dot2_f32_bf16 v%d, v%d, v%d, v%d" % (V_ST + (i & 1), V_ACT + 4 * j + i, V_WF + 4 * j + i, V_ST + (i & 1)))
    a("s_nop 3")
    a("v_add_f32 v%d, v%d, v%d" % (V_ST, V_ST, V_ST + 1))
    xlane_sum(a, V_ST, V_TMP)
    a("v_mul_f32 v%d, %s, v%d" % (V_ST, f32(-LOG2E), V_ST))
    a("v_exp_f32 v%d, v%d" % (V_ST, V_ST))
    a("s_nop 0")
    a("v_add_f32 v%d, 1.0, v%d" % (V_ST, V_ST))
    a("v_rcp_f32 v%d, v%d" % (V_ST, V_ST))
    a("v_lshlrev_b32 v%d, 2, v%d" % (V_TMP, V_ROW))
    a("s_mov_b32 s38, 0x%x" % WS_G)
    a("buffer_store_dword v%d, v%d, s[%d:%d], s38 offen" % (V_ST, V_TMP, S_WS, S_WS + 3))
    a.label("K1_end")
    a("s_endpgm")


ATT_LDS_K = 0
ATT_LDS_V = 24576
SCALE_L2 = (DH ** -0.5) * LOG2E


def gen_attention(a):
    S_HEAD = S_CT
    vL, vG = V_L15, V_G
    a("v_and_b32 v%d, 63, v0" % V_LANE)
    a("v_lshrrev_b32 v%d, 6, v0" % V_TMP)
    a("v_and_b32 v%d, 15, v0" % vL)
    a("v_readfirstlane_b32 s%d, v%d" % (S_WAVE, V_TMP))
    a("v_bfe_u32 v%d, v0, 4, 2" % vG)
    a("v_lshlrev_b32 v%d, 4, v%d" % (V_AOFF, V_LANE))
    a("s_lshl_b32 s38, s%d, 17" % S_HEAD)
    a("s_lshl_b32 s39, s%d, 3" % S_RB)
    a("s_sub_u32 s39, s39, 16")
    a("s_add_u32 s39, s39, s%d" % S_WAVE)
    a("s_lshl_b32 s%d, s%d, 10" % (S_M0, S_WAVE))
    for i in range(3):
        a("s_add_i32 s40, s39, %d" % (8 * i))
        a("s_max_i32 s40, s40, 0")
        a("s_lshl_b32 s40, s40, 10")
        a("s_add_u32 s40, s40, s38")
        a("s_add_u32 s41, s40, 0x%x" % WS_K)
        a("s_add_u32 s42, s40, 0x%x" % WS_V)
        a("s_add_u32 s43, s%d, %d" % (S_M0, ATT_LDS_K + 8192 * i))
        a("s_mov_b32 m0, s43")
        a("s_add_u32 s43, s%d, %d" % (S_M0, ATT_LDS_V + 8192 * i))
        a("buffer_load_dwordx4 v%d, s[%d:%d], s41 offen lds" % (V_AOFF, S_WS, S_WS + 3))
        a("s_mov_b32 m0, s43")
        a("s_nop 0")
        a("buffer_load_dwordx4 v%d, s[%d:%d], s42 offen lds" % (V_AOFF, S_WS, S_WS + 3))
    vQ = 8
    a("s_lshl_b32 s40, s%d, 3" % S_RB)
    a("s_add_u32 s40, s40, s%d" % S_WAVE)
    a("s_lshl_b32 s41, s40, 10")
    a("s_add_u32 s41, s41, s38")
    a("buffer_load_dwordx4 %s, v%d, s[%d:%d], s41 offen" % (vr(vQ, 4), V_AOFF, S_WS, S_WS + 3))
    a("s_and_b32 s42, s%d, 6" % S_WAVE)
    a("s_and_b32 s43, s%d, 1" % S_WAVE)
    vKA, vVA = 12, 13
    a("s_lshl_b32 s44, s42, 10")
    a("v_add_u32 v%d, s44, v%d" % (vKA, V_AOFF))
    a("v_add_u32 v%d, %d, v%d" % (vVA, ATT_LDS_V, vKA))
    vD = 14
    a("s_lshl_b32 s44, s43, 4")
    a("s_add_u32 s44, s44, 256")
    a("v_lshlrev_b32 v%d, 2, v%d" % (V_TMP, vG))
    a("v_sub_u32 v%d, v%d, v%d" % (vD, vL, V_TMP))
    a("v_add_u32 v%d, s44, v%d" % (vD, vD))
    a("s_add_u32 s45, s43, 16")
    a("s_sub_i32 s45, s45, s40")
    a("s_max_i32 s45, s45, 0")
    NEG = 0xf149f2ca
    vS = 32
    vB = 16
    vKF = 104
    vNEG = 15
    a("v_mov_b32 v%d, 0x%x" % (vNEG, NEG))
    for bi, pos in enumerate((0, 1, 16, 17)):
        for r in range(4):
            a("v_subrev_u32 v%d, %d, v%d" % (V_TMP, 16 * pos + r, vD))
            a("v_cmp_gt_u32 vcc, 256, v%d" % V_TMP)
            a("s_nop 1")
            a("v_cndmask_b32 v%d, v%d, 0, vcc" % (vB + 4 * bi + r, vNEG))
    for bi in range(2):
        lab = a.newlabel("Lb")
        a("s_cmp_gt_i32 s45, %d" % bi)
        a("s_cbranch_scc0 %s" % lab)
        for r in range(4):
            a("v_mov_b32 v%d, v%d" % (vB + 4 * bi + r, vNEG))
        a.label(lab)
    a("s_waitcnt vmcnt(0)")
    a("s_barrier")
    for pos in range(18):
        a("ds_read_b128 %s, v%d offset:%d" % (vr(vKF + 4 * (pos & 3), 4), vKA, 1024 * pos))
        if pos >= 2:
            p = pos - 2
            a("s_waitcnt lgkmcnt(2)")
            emit_s_mfma(a, p, vS, vKF, vQ, vB)
    a("s_waitcnt lgkmcnt(1)")
    emit_s_mfma(a, 16, vS, vKF, vQ, vB)
    a("s_waitcnt lgkmcnt(0)")
    emit_s_mfma(a, 17, vS, vKF, vQ, vB)
    vVF = 120
    for p in range(9):
        for dt in range(2):
            a("ds_read_b128 %s, v%d offset:%d" % (vr(vVF + 8 * p + 4 * dt, 4), vVA, 2048 * p + 1024 * dt))
    lab = a.newlabel("Lnofix")
    a("s_cmp_le_i32 s45, 2")
    a("s_cbranch_scc1 %s" % lab)
    a("s_nop 7")
    for pos in range(2, 16):
        l2 = a.newlabel("Lf")
        a("s_cmp_gt_i32 s45, %d" % pos)
        a("s_cbranch_scc0 %s" % l2)
        for r in range(4):
            a("v_mov_b32 v%d, v%d" % (vS + 4 * pos + r, vNEG))
        a.label(l2)
    a.label(lab)
    a("s_nop 7")
    vM = 4
    a("v_max3_f32 v%d, v%d, v%d, v%d" % (vM, vS, vS + 1, vS + 2))
    a("v_max3_f32 v%d, v%d, v%d, v%d" % (vM + 1, vS + 3, vS + 4, vS + 5))
    k = 6
    tog = 0
    while k < 72:
        a("v_max3_f32 v%d, v%d, v%d, v%d" % (vM + tog, vM + tog, vS + k, vS + k + 1))
        tog ^= 1
        k += 2
    a("v_max_f32 v%d, v%d, v%d" % (vM, vM, vM + 1))
    xlane_max(a, vM, V_TMP)
    a("s_mov_b32 s46, %s" % f32(SCALE_L2))
    a("v_mul_f32 v%d, %s, v%d" % (vM, f32(-SCALE_L2), vM))
    vO = 16
    for p in range(9):
        b = vS + 8 * p
        for e in range(8):
            a("v_fma_f32 v%d, v%d, s46, v%d" % (b + e, b + e, vM))
        for e in range(8):
            a("v_exp_f32 v%d, v%d" % (b + e, b + e))
        a("s_nop 0")
        for e in range(4):
            a("v_cvt_pk_bf16_f32 v%d, v%d, v%d" % (b + e, b + 2 * e, b + 2 * e + 1))
        if p == 0:
            a("s_waitcnt lgkmcnt(0)")
        else:
            a("s_nop 0")
        a("s_nop 0")
        for dt in range(2):
            c = "0" if p == 0 else vr(vO + 4 * dt, 4)
            a("v_mfma_f32_16x16x32_bf16 %s, %s, %s, %s" % (vr(vO + 4 * dt, 4), vr(vVF + 8 * p + 4 * dt, 4), vr(b, 4), c))
    a("s_lshl_b32 s41, s40, 4")
    a("v_add_u32 v%d, s41, v%d" % (V_TMP, vL))
    a("v_mul_u32_u24 v%d, 896, v%d" % (V_TMP, V_TMP))
    a("v_lshl_add_u32 v%d, v%d, 3, v%d" % (V_TMP, vG, V_TMP))
    a("s_mul_i32 s41, s%d, 56" % S_HEAD)
    a("s_add_u32 s41, s41, 0x%x" % WS_O)
    a("v_lshlrev_b32 v%d, 2, v%d" % (V_TMP + 1, vL))
    a("v_add_u32 v%d, 192, v%d" % (V_TMP + 1, V_TMP + 1))
    a("s_nop 4")
    a("ds_bpermute_b32 v%d, v%d, v%d" % (V_TMP + 2, V_TMP + 1, vO + 4))
    a("s_waitcnt lgkmcnt(0)")
    a("v_rcp_f32 v%d, v%d" % (V_TMP + 2, V_TMP + 2))
    a("s_nop 0")
    for e in range(8):
        a("v_mul_f32 v%d, v%d, v%d" % (vO + e, vO + e, V_TMP + 2))
    for e in range(4):
        a("v_cvt_pk_bf16_f32 v%d, v%d, v%d" % (vO + 8 + e, vO + 2 * e, vO + 2 * e + 1))
    a("buffer_store_dwordx2 %s, v%d, s[%d:%d], s41 offen" % (vr(vO + 8, 2), V_TMP, S_WS, S_WS + 3))
    a("v_cmp_gt_u32 vcc, 3, v%d" % vG)
    a("s_and_saveexec_b64 s[48:49], vcc")
    a("buffer_store_dwordx2 %s, v%d, s[%d:%d], s41 offen offset:32" % (vr(vO + 10, 2), V_TMP, S_WS, S_WS + 3))
    a("s_endpgm")


def emit_s_mfma(a, p, vS, vKF, vQ, vB):
    bias = {0: 0, 1: 1, 16: 2, 17: 3}
    c = vr(vB + 4 * bias[p], 4) if p in bias else "0"
    a("v_mfma_f32_16x16x32_bf16 %s, %s, %s, %s" % (vr(vS + 4 * p, 4), vr(vKF + 4 * (p & 3), 4), vr(vQ, 4), c))


def gen_k2(a):
    kernel_header(a, "k2_kernel")
    a("s_cmp_ge_u32 s2, 320")
    a("s_cbranch_scc1 K2_end")
    a("s_load_dwordx2 s[28:29], s[0:1], 0")
    a("s_load_dwordx2 s[30:31], s[0:1], 40")
    a("s_load_dwordx2 s[36:37], s[0:1], 88")
    a("s_cmp_ge_u32 s2, 64")
    a("s_cbranch_scc1 K2_att")
    a("s_and_b32 s38, s2, 7")
    a("s_lshr_b32 s39, s2, 3")
    a("s_lshl_b32 s%d, s38, 1" % S_RB)
    a("s_and_b32 s%d, s39, 1" % S_CT)
    a("s_add_u32 s%d, s%d, s%d" % (S_RB, S_RB, S_CT))
    a("s_lshr_b32 s%d, s39, 1" % S_CT)
    a("s_waitcnt lgkmcnt(0)")
    make_srd(a, S_WS, 36, 37, WS_SIZE)
    make_srd(a, S_ACT, 36, 37, ACT_BYTES, "0x%x" % WS_HSH)
    make_srd(a, S_X, 28, 29, ACT_BYTES)
    a("s_mul_i32 s38, s%d, 224" % S_CT)
    make_srd(a, S_WT, 30, 31, "0x%x" % (D * D * 2), "s38")
    a("s_sub_u32 s%d, s%d, s38" % (S_WT + 2, S_WT + 2))
    a("s_movk_i32 s%d, 896" % S_LDW)
    gemm448_prologue(a, False)
    t0 = V_EX + 14
    a("v_mul_u32_u24 v%d, 896, v%d" % (t0, V_ROW))
    a("v_lshl_add_u32 v%d, v%d, 3, v%d" % (t0, V_G, t0))
    for t in range(7):
        a("buffer_load_dwordx2 %s, v%d, s[%d:%d], s38 offen offset:%d" % (vr(V_EX + 2 * t, 2), t0, S_X, S_X + 3, 32 * t))
    gemm448_main(a, False, False, False, extra_vm=7)
    a("s_waitcnt vmcnt(0)")
    a("s_nop 7")
    for t in range(7):
        for hh in range(2):
            y = V_ACC + 4 * t + 2 * hh
            x = V_EX + 2 * t + hh
            a("v_lshlrev_b32 v%d, 16, v%d" % (V_TMP, x))
            a("v_and_b32 v%d, 0xffff0000, v%d" % (V_TMP + 1, x))
            a("v_pk_add_f32 %s, %s, %s" % (vr(y, 2), vr(y, 2), vr(V_TMP, 2)))
            a("v_cvt_pk_bf16_f32 v%d, v%d, v%d" % (V_WF + 2 * t + hh, y, y + 1))
    a("s_add_u32 s38, s38, 0x%x" % WS_X1)
    for t in range(7):
        a("buffer_store_dwordx2 %s, v%d, s[%d:%d], s38 offen offset:%d" % (vr(V_WF + 2 * t, 2), t0, S_WS, S_WS + 3, 32 * t))
    a("s_endpgm")
    a.label("K2_att")
    a("s_sub_u32 s38, s2, 64")
    a("s_lshr_b32 s39, s38, 3")
    a("s_and_b32 s38, s38, 7")
    a("s_lshl_b32 s%d, s38, 1" % S_RB)
    a("s_and_b32 s%d, s39, 1" % S_CT)
    a("s_add_u32 s%d, s%d, s%d" % (S_RB, S_RB, S_CT))
    a("s_lshr_b32 s%d, s39, 1" % S_CT)
    a("s_waitcnt lgkmcnt(0)")
    make_srd(a, S_WS, 36, 37, WS_SIZE)
    gen_attention(a)
    a.label("K2_end")
    a("s_endpgm")


def gen_k3(a):
    kernel_header(a, "k3_kernel")
    a("s_cmp_ge_u32 s2, 256")
    a("s_cbranch_scc1 K3_end")
    a("s_load_dwordx2 s[30:31], s[0:1], 48")
    a("s_load_dwordx2 s[36:37], s[0:1], 88")
    a("s_and_b32 s38, s2, 7")
    a("s_lshr_b32 s39, s2, 3")
    a("s_lshr_b32 s%d, s38, 1" % S_RB)
    a("s_lshl_b32 s%d, s%d, 2" % (S_RB, S_RB))
    a("s_and_b32 s%d, s39, 3" % S_CT)
    a("s_add_u32 s%d, s%d, s%d" % (S_RB, S_RB, S_CT))
    a("s_and_b32 s%d, s38, 1" % S_CT)
    a("s_lshl_b32 s%d, s%d, 3" % (S_CT, S_CT))
    a("s_lshr_b32 s39, s39, 2")
    a("s_add_u32 s%d, s%d, s39" % (S_CT, S_CT))
    a("s_waitcnt lgkmcnt(0)")
    make_srd(a, S_WS, 36, 37, WS_SIZE)
    make_srd(a, S_ACT, 36, 37, ACT_BYTES, "0x%x" % WS_X1)
    a("s_mul_i32 s38, s%d, 224" % S_CT)
    make_srd(a, S_WT, 30, 31, "0x%x" % (D * F * 2), "s38")
    a("s_sub_u32 s%d, s%d, s38" % (S_WT + 2, S_WT + 2))
    a("s_movk_i32 s%d, 3584" % S_LDW)
    gemm448_prologue(a, True)
    gemm448_main(a, False, True, True)
    ln_gelu_epilogue(a)
    t0 = V_TMP
    a("v_mul_u32_u24 v%d, 3584, v%d" % (t0, V_ROW))
    a("v_lshl_add_u32 v%d, v%d, 3, v%d" % (t0, V_G, t0))
    a("s_add_u32 s38, s38, 0x%x" % WS_H3)
    a("v_add_u32 v%d, s38, v%d" % (t0, t0))
    for i in range(7):
        a("buffer_store_dwordx2 %s, v%d, s[%d:%d], s%d offen" % (vr(V_WF + 2 * i, 2), t0, S_WS, S_WS + 3, S_T + i))
    a.label("K3_end")
    a("s_endpgm")


NST = 35
RING = 8


def gen_k4(a):
    kernel_header(a, "k4_kernel")
    a("s_cmp_ge_u32 s2, 224")
    a("s_cbranch_scc1 K4_end")
    a("s_load_dwordx2 s[28:29], s[0:1], 16")
    a("s_load_dwordx2 s[30:31], s[0:1], 56")
    a("s_load_dwordx2 s[32:33], s[0:1], 72")
    a("s_load_dwordx2 s[36:37], s[0:1], 88")
    a("s_and_b32 s38, s2, 7")
    a("s_lshr_b32 s39, s2, 3")
    a("s_lshl_b32 s%d, s38, 2" % S_RB)
    a("s_and_b32 s%d, s39, 3" % S_CT)
    a("s_add_u32 s%d, s%d, s%d" % (S_RB, S_RB, S_CT))
    a("s_lshr_b32 s%d, s39, 2" % S_CT)
    a("v_and_b32 v%d, 63, v0" % V_LANE)
    a("v_lshrrev_b32 v%d, 6, v0" % V_TMP)
    a("v_and_b32 v%d, 15, v0" % V_L15)
    a("v_readfirstlane_b32 s%d, v%d" % (S_WAVE, V_TMP))
    a("v_bfe_u32 v%d, v0, 4, 2" % V_G)
    a("s_waitcnt lgkmcnt(0)")
    S_WO, S_W4, S_OUT = 4, 8, 16
    a("s_lshl_b32 s38, s%d, 7" % S_CT)
    make_srd(a, S_WO, 28, 29, "0x%x" % (D * D * 2), "s38")
    a("s_sub_u32 s%d, s%d, s38" % (S_WO + 2, S_WO + 2))
    make_srd(a, S_W4, 30, 31, "0x%x" % (F * D * 2), "s38")
    a("s_sub_u32 s%d, s%d, s38" % (S_W4 + 2, S_W4 + 2))
    make_srd(a, S_WS, 36, 37, WS_SIZE)
    make_srd(a, S_OUT, 32, 33, ACT_BYTES)
    t0, t1, t2, t3 = V_TMP, V_TMP + 1, V_TMP + 2, V_TMP + 3
    vAo, vAh, vWo = 16, 17, 18
    a("s_and_b32 s40, s%d, 3" % S_WAVE)
    a("s_lshr_b32 s41, s%d, 2" % S_WAVE)
    a("s_lshl_b32 s42, s%d, 6" % S_RB)
    a("s_lshl_b32 s43, s40, 4")
    a("s_add_u32 s42, s42, s43")
    a("v_add_u32 v%d, s42, v%d" % (V_ROW, V_L15))
    a("s_lshl_b32 s43, s41, 6")
    a("v_lshl_add_u32 v%d, v%d, 4, s43" % (t0, V_G))
    a("v_mul_u32_u24 v%d, 896, v%d" % (vAo, V_ROW))
    a("v_add3_u32 v%d, v%d, v%d, 0" % (vAo, vAo, t0))
    a("v_add_u32 v%d, 0x%x, v%d" % (vAo, WS_O, vAo))
    a("v_mul_u32_u24 v%d, 3584, v%d" % (vAh, V_ROW))
    a("v_add_u32 v%d, v%d, v%d" % (vAh, vAh, t0))
    a("v_add_u32 v%d, 0x%x, v%d" % (vAh, WS_H3, vAh))
    a("v_lshrrev_b32 v%d, 3, v0" % t0)
    a("v_bfe_u32 v%d, v%d, 2, 2" % (t1, t0))
    a("v_lshlrev_b32 v%d, 3, v%d" % (t1, t1))
    a("v_bfe_u32 v%d, v%d, 4, 1" % (t2, t0))
    a("v_lshl_add_u32 v%d, v%d, 2, v%d" % (t1, t2, t1))
    a("v_and_b32 v%d, 35, v%d" % (t2, t0))
    a("v_add_u32 v%d, v%d, v%d" % (t1, t1, t2))
    a("v_bfe_u32 v%d, v%d, 1, 2" % (t2, t0))
    a("v_lshlrev_b32 v%d, 1, v%d" % (t2, t2))
    a("v_and_b32 v%d, 7, v0" % t3)
    a("v_xor_b32 v%d, v%d, v%d" % (t2, t2, t3))
    a("v_mul_u32_u24 v%d, 896, v%d" % (vWo, t1))
    a("v_lshl_add_u32 v%d, v%d, 4, v%d" % (vWo, t2, vWo))
    vRA, vRW = 19, 20
    a("s_lshl_b32 s43, s40, 10")
    a("v_lshl_add_u32 v%d, v%d, 4, s43" % (vRA, V_LANE))
    a("v_lshrrev_b32 v%d, 2, v%d" % (t0, V_L15))
    a("v_lshl_add_u32 v%d, v%d, 2, v%d" % (t0, V_G, t0))
    a("v_bfe_u32 v%d, v%d, 1, 2" % (t1, t0))
    a("v_lshlrev_b32 v%d, 1, v%d" % (t1, t1))
    a("v_bfe_u32 v%d, v%d, 1, 1" % (t2, V_L15))
    a("s_lshl_b32 s43, s41, 2")
    for tt in range(2):
        a("v_add_u32 v%d, s43, v%d" % (t3, t2))
        if tt:
            a("v_add_u32 v%d, 2, v%d" % (t3, t3))
        a("v_xor_b32 v%d, v%d, v%d" % (t3, t3, t1))
        a("v_lshlrev_b32 v%d, 4, v%d" % (t3, t3))
        a("v_lshl_add_u32 v%d, v%d, 7, v%d" % (vRW + tt, t0, t3))
        a("v_and_b32 v%d, 1, v%d" % (t3, V_L15))
        a("v_lshl_add_u32 v%d, v%d, 3, v%d" % (vRW + tt, t3, vRW + tt))
        a("v_add_u32 v%d, 8192, v%d" % (vRW + tt, vRW + tt))
    vRA2, vRW2 = 22, 96
    a("v_add_u32 v%d, 0x10000, v%d" % (vRA2, vRA))
    a("v_add_u32 v%d, 0x10000, v%d" % (vRW2, vRW))
    a("v_add_u32 v%d, 0x10000, v%d" % (vRW2 + 1, vRW + 1))
    a("s_lshl_b32 s%d, s%d, 10" % (S_M0, S_WAVE))

    def issue(s):
        slot = s % RING
        a("s_add_u32 s44, s%d, %d" % (S_M0, slot * 16384))
        a("s_mov_b32 m0, s44")
        if s < 7:
            a("s_movk_i32 s45, %d" % (128 * s))
            a("buffer_load_dwordx4 v%d, s[%d:%d], s45 offen lds" % (vAo, S_WS, S_WS + 3))
        else:
            a("s_movk_i32 s45, %d" % (128 * (s - 7)))
            a("buffer_load_dwordx4 v%d, s[%d:%d], s45 offen lds" % (vAh, S_WS, S_WS + 3))
        a("s_add_u32 s44, s44, 8192")
        a("s_mov_b32 m0, s44")
        if s < 7:
            a("s_mov_b32 s45, %d" % (64 * 896 * s))
            a("buffer_load_dwordx4 v%d, s[%d:%d], s45 offen lds" % (vWo, S_WO, S_WO + 3))
        else:
            a("s_mov_b32 s45, %d" % (64 * 896 * (s - 7)))
            a("buffer_load_dwordx4 v%d, s[%d:%d], s45 offen lds" % (vWo, S_W4, S_W4 + 3))

    vX, vGt, vEo = 24, 28, 29
    a("v_mul_u32_u24 v%d, 896, v%d" % (vEo, V_ROW))
    a("v_lshl_add_u32 v%d, v%d, 3, v%d" % (vEo, V_G, vEo))
    a("s_lshl_b32 s46, s41, 6")
    a("s_add_u32 s46, s46, s38")
    a("s_add_u32 s47, s46, 0x%x" % WS_X1)
    a("buffer_load_dwordx2 %s, v%d, s[%d:%d], s47 offen" % (vr(vX, 2), vEo, S_WS, S_WS + 3))
    a("buffer_load_dwordx2 %s, v%d, s[%d:%d], s47 offen offset:32" % (vr(vX + 2, 2), vEo, S_WS, S_WS + 3))
    a("v_lshlrev_b32 v%d, 2, v%d" % (t0, V_ROW))
    a("s_mov_b32 s47, 0x%x" % WS_G)
    a("buffer_load_dword v%d, v%d, s[%d:%d], s47 offen" % (vGt, t0, S_WS, S_WS + 3))
    for s in range(RING - 1):
        issue(s)
    vFA = 32
    vFW = 48
    vAa = 80
    vAb = 88
    for s in range(NST + 1):
        if s < NST:
            issued = min(s + RING - 1, NST)
            a("s_waitcnt vmcnt(%d)" % (2 * (issued - (s + 1))))
            a("s_barrier")
            if s + RING - 1 < NST:
                issue(s + RING - 1)
            slot = s % RING
            ra, rw = (vRA, vRW) if slot < 4 else (vRA2, vRW2)
            base = (slot & 3) * 16384
            b = s & 1
            for j in range(2):
                a("ds_read_b128 %s, v%d offset:%d" % (vr(vFA + 8 * b + 4 * j, 4), ra, base + 4096 * j))
                for tt in range(2):
                    for qd in range(2):
                        a("ds_read_b64_tr_b16 %s, v%d offset:%d" % (vr(vFW + 16 * b + 8 * j + 4 * tt + 2 * qd, 2), rw + tt, base + 4096 * j + 2048 * qd))
        if s > 0:
            ss = s - 1
            b = ss & 1
            acc = vAa if ss < 7 else vAb
            for j in range(2):
                for tt in range(2):
                    first = (ss == 0 or ss == 7) and j == 0
                    c = "0" if first else vr(acc + 4 * tt, 4)
                    a("v_mfma_f32_16x16x32_bf16 %s, %s, %s, %s" % (vr(acc + 4 * tt, 4), vr(vFW + 16 * b + 8 * j + 4 * tt, 4), vr(vFA + 8 * b + 4 * j, 4), c))
        a("s_waitcnt lgkmcnt(0)")
    a("s_nop 7")
    vOm = 30
    a("v_sub_f32 v%d, 1.0, v%d" % (vOm, vGt))
    for tt in range(2):
        for hh in range(2):
            x = vX + 2 * tt + hh
            bb = vAb + 4 * tt + 2 * hh
            aa = vAa + 4 * tt + 2 * hh
            a("v_lshlrev_b32 v%d, 16, v%d" % (t0, x))
            a("v_and_b32 v%d, 0xffff0000, v%d" % (t1, x))
            a("v_add_f32 v%d, v%d, v%d" % (bb, bb, t0))
            a("v_add_f32 v%d, v%d, v%d" % (bb + 1, bb + 1, t1))
            a("v_mul_f32 v%d, v%d, v%d" % (bb, bb, vOm))
            a("v_mul_f32 v%d, v%d, v%d" % (bb + 1, bb + 1, vOm))
            a("v_fmac_f32 v%d, v%d, v%d" % (bb, aa, vGt))
            a("v_fmac_f32 v%d, v%d, v%d" % (bb + 1, aa + 1, vGt))
            a("v_cvt_pk_bf16_f32 v%d, v%d, v%d" % (vFA + 2 * tt + hh, bb, bb + 1))
    a("buffer_store_dwordx2 %s, v%d, s[%d:%d], s46 offen" % (vr(vFA, 2), vEo, S_OUT, S_OUT + 3))
    a("buffer_store_dwordx2 %s, v%d, s[%d:%d], s46 offen offset:32" % (vr(vFA + 2, 2), vEo, S_OUT, S_OUT + 3))
    a.label("K4_end")
    a("s_endpgm")


def main():
    hdr = open("gated_mix__sliding_block__mixer_s_mlp__prompt.s.ref").read().split("\n")
    head = [l for l in hdr if l.startswith(";") and "@launch" not in l and "Override" not in l and "grid=ceil" not in l]
    out = list(head)
    out.append("; @launch kernel=k1_kernel grid=(272,1,1) block=(512,1,1) lds=%d" % GEMM_LDS)
    out.append("; @launch kernel=k2_kernel grid=(320,1,1) block=(512,1,1) lds=%d" % GEMM_LDS)
    out.append("; @launch kernel=k3_kernel grid=(256,1,1) block=(512,1,1) lds=%d" % GEMM_LDS)
    out.append("; @launch kernel=k4_kernel grid=(224,1,1) block=(512,1,1) lds=%d" % (RING * 16384))
    out.append('.amdgcn_target "amdgcn-amd-amdhsa--gfx950"')
    out.append(".text")
    a = Asm()
    gen_k1(a)
    gen_k2(a)
    gen_k3(a)
    gen_k4(a)
    out.append(a.text())
    out.append('.section .rodata,"a"')
    out.append(kernel_desc("k1_kernel", 192))
    out.append(kernel_desc("k2_kernel", 192))
    out.append(kernel_desc("k3_kernel", 192))
    out.append(kernel_desc("k4_kernel", 104))
    path = sys.argv[1] if len(sys.argv) > 1 else "gated_mix__sliding_block__mixer_s_mlp__prompt.s"
    open(path, "w").write("\n".join(out) + "\n")


if __name__ == "__main__":
    main()
```
